```python
import torch

def _softmax(x, axis=-1):
    return torch.softmax(x, dim=axis)
def _gelu(x):
    return torch.nn.functional.gelu(x, approximate="tanh")
def _silu(x):
    return torch.nn.functional.silu(x)
def _sigmoid(x):
    return torch.sigmoid(x)
def _layernorm(x, axis=-1, eps=1e-5):
    m = x.mean(dim=axis, keepdim=True)
    v = x.var(dim=axis, keepdim=True, unbiased=False)
    return (x - m) / torch.sqrt(v + eps)
def _scatter_add(tgt, idx, src, axis=0):
    return tgt.clone().index_add_(axis, idx, src)
def _segment_sum(src, seg, n):
    out = torch.zeros((n,) + src.shape[1:], dtype=src.dtype)
    return out.index_add_(0, seg, src)
def _pad(x, pw):
    flat = tuple(v for pair in reversed(pw) for v in pair)
    return torch.nn.functional.pad(x, flat)

kernel_name = 'interleave_layers__sliding_local_dilated__ssm_conv_s4d__prompt'

def setup_inputs():

    _w = (lambda a: (lambda t: t.to(torch.bfloat16) if t.is_floating_point() else t)(torch.as_tensor(a)))
    def _A_setup():
        B, S, D = 1, 2048, 512
        return {
            "x": _w((lambda *s: torch.randn(*s, dtype=torch.bfloat16) * 0.05)(B, S, D)),
            "wqkv": _w((lambda *s: torch.randn(*s, dtype=torch.bfloat16) * 0.05)(D, 3 * D)),
            "wo": _w((lambda *s: torch.randn(*s, dtype=torch.bfloat16) * 0.05)(D, D)),
        }
    _A_in = _A_setup()

    def _B_setup():
        Bsz, L, D, N = 1, 2048, 512, 128
        return {
            "u": _w((lambda *s: torch.randn(*s, dtype=torch.bfloat16) * 0.05)(Bsz, L, D)),
            "log_A_real": _w((lambda *s: torch.randn(*s, dtype=torch.bfloat16) * 6.4)(D, N) * 0.5),
            "A_imag": _w((lambda *s: torch.randn(*s, dtype=torch.bfloat16) * 0.1)(D, N) * 3.14),
            "C_real": _w((lambda *s: torch.randn(*s, dtype=torch.bfloat16) * 0.1)(D, N) / N ** 0.5),
            "C_imag": _w((lambda *s: torch.randn(*s, dtype=torch.bfloat16) * 0.1)(D, N) / N ** 0.5),
            "log_dt": _w((lambda *s: torch.randn(*s, dtype=torch.bfloat16) * 0.1)(D) * 0.5 - 4.0),
            "D_skip": _w((lambda *s: torch.randn(*s, dtype=torch.bfloat16) * 0.1)(D)),
        }
    _B_in = _B_setup()

    return {
        "A_x": _A_in["x"],
        "A_wqkv": _A_in["wqkv"],
        "A_wo": _A_in["wo"],
        "B_u": _B_in["u"],
        "B_log_A_real": _B_in["log_A_real"],
        "B_A_imag": _B_in["A_imag"],
        "B_C_real": _B_in["C_real"],
        "B_C_imag": _B_in["C_imag"],
        "B_log_dt": _B_in["log_dt"],
        "B_D_skip": _B_in["D_skip"],
    }

def reference(A_x, A_wqkv, A_wo, B_u, B_log_A_real, B_A_imag, B_C_real, B_C_imag, B_log_dt, B_D_skip):
    def _A_ref(x, wqkv, wo):
        B, S, D = x.shape
        H = 32; Dh = D // H
        W, dil = 8, 2
        qkv = (lambda x, *d: x.permute(*d))((x @ wqkv).reshape(B, S, 3, H, Dh), 2, 0, 3, 1, 4)
        q, k, v = qkv[0], qkv[1], qkv[2]
        scale = Dh ** -0.5
        pos = torch.arange(S)
        off = torch.arange(W) * dil
        idx = pos[:, None] - off[None, :]
        mask = idx >= 0
        idx_c = torch.where(mask, idx, 0).reshape(-1)
        kg = k[:, :, idx_c, :].reshape(B, H, S, W, Dh)
        vg = v[:, :, idx_c, :].reshape(B, H, S, W, Dh)
        logits = torch.einsum("bhsd,bhswd->bhsw", q, kg) * scale
        logits = torch.where(mask[None, None, :, :], logits, -1e9)
        attn = _softmax(logits, axis=-1)
        o = torch.einsum("bhsw,bhswd->bhsd", attn, vg)
        return (lambda x, *d: x.permute(*d))(o, 0, 2, 1, 3).reshape(B, S, D) @ wo

    def _B_ref(u, log_A_real, A_imag, C_real, C_imag, log_dt, D_skip):
        L = u.shape[1]
        dt = torch.exp(log_dt)
        A = -torch.exp(log_A_real) + 1j * A_imag
        C = (C_real + 1j * C_imag) * dt[:, None]
        pos = (lambda x, dt: x.to(dt))(torch.arange(L), log_dt.dtype)
        P = torch.exp((A * dt[:, None])[:, :, None] * pos[None, None, :])
        K = 2.0 * torch.einsum("dn,dnl->dl", C, P).real
        L2 = 2 * L
        u_t = (lambda x, *d: x.permute(*d))(u, 0, 2, 1)
        Kf = (lambda x, *a, **k: torch.fft.rfft(x.float(), *a, **k))(K, L2)
        Uf = (lambda x, *a, **k: torch.fft.rfft(x.float(), *a, **k))(u_t, L2)
        y = (lambda x, *a, **k: torch.fft.irfft(x, *a, **k).to(torch.bfloat16))(Uf * Kf[None, :, :], L2)[:, :, :L]
        y = (lambda x, *d: x.permute(*d))(y, 0, 2, 1)
        return y + u * D_skip[None, None, :]

    x = A_x
    x = x + _A_ref(_layernorm(x, axis=-1), A_wqkv, A_wo)
    x = x + _B_ref(_layernorm(x, axis=-1), B_log_A_real, B_A_imag, B_C_real, B_C_imag, B_log_dt, B_D_skip)
    x = x + _A_ref(_layernorm(x, axis=-1), A_wqkv, A_wo)
    x = x + _B_ref(_layernorm(x, axis=-1), B_log_A_real, B_A_imag, B_C_real, B_C_imag, B_log_dt, B_D_skip)
    return x
```

```python
import sys
FOLD = int(sys.argv[1]) if len(sys.argv) > 1 else 0
KBF  = int(sys.argv[2]) if len(sys.argv) > 2 else 0
EXTRA_EMPTY = int(sys.argv[3]) if len(sys.argv) > 3 else 0
OUT = sys.argv[4] if len(sys.argv) > 4 else 'naive.s'
PERT = sys.argv[5] if len(sys.argv) > 5 else ''
import struct
def f2h(x): return hex(struct.unpack('<I', struct.pack('<f', x))[0])

MB = 1 << 20
XF = [0*MB, 4*MB, 8*MB, 12*MB, 16*MB]
U  = 20*MB
QKV = 24*MB
O  = 36*MB
KT = 40*MB
launches = []
code = []

def header(name, nwg):
    return f"""
.text
.globl {name}
.p2align 8
.type {name},@function
{name}:
  s_cmp_ge_u32 s2, {nwg}
  s_cbranch_scc1 L_end_{name}
  s_load_dwordx2 s[4:5], s[0:1], 96
  s_load_dwordx2 s[6:7], s[0:1], 80
"""
def footer(name, vgpr=128):
    return f"""
L_end_{name}:
  s_endpgm
.section .rodata,"a"
.p2align 6
.amdhsa_kernel {name}
  .amdhsa_next_free_vgpr {vgpr}
  .amdhsa_next_free_sgpr 96
  .amdhsa_accum_offset {vgpr}
  .amdhsa_group_segment_fixed_size 0
  .amdhsa_kernarg_size 104
  .amdhsa_user_sgpr_count 2
  .amdhsa_user_sgpr_kernarg_segment_ptr 1
  .amdhsa_system_sgpr_workgroup_id_x 1
  .amdhsa_float_denorm_mode_32 3
.end_amdhsa_kernel
"""
def srd(d, lo, hi, size):
    return f"  s_mov_b32 s{d}, s{lo}\n  s_mov_b32 s{d+1}, s{hi}\n  s_mov_b32 s{d+2}, {size}\n  s_mov_b32 s{d+3}, 0x20000\n"
def rbf(v, tmp=None):
    return f"  v_cvt_pk_bf16_f32 v{v}, 0, v{v}\n"
WS_SRD = srd(8, 4, 5, 0x10000000)
def add(name, nwg, block, body, vgpr=128):
    launches.append(f"; @launch kernel={name} grid=({nwg},1,1) block=({block},1,1) lds=0")
    code.append(header(name, nwg) + body + footer(name, vgpr))

def k_cvt(name):
    b = "  s_load_dwordx2 s[12:13], s[0:1], 0\n  s_waitcnt lgkmcnt(0)\n" + WS_SRD + srd(16, 12, 13, 2097152)
    b += f"""
  s_lshl_b32 s3, s2, 8
  v_add_u32 v1, s3, v0
  v_lshlrev_b32 v2, 1, v1
  buffer_load_ushort v3, v2, s[16:19], 0 offen
  v_lshlrev_b32 v4, 2, v1
  s_mov_b32 s20, {XF[0]}
  s_waitcnt vmcnt(0)
  v_lshlrev_b32 v3, 16, v3
  buffer_store_dword v3, v4, s[8:11], s20 offen
"""
    add(name, 4096, 256, b)

def wave_sum(v, t1, t2):
    s = ""
    for m in (1,2,4,8,16,32):
        s += f"  v_xor_b32 v{t1}, {m*4}, v{t2}\n  ds_bpermute_b32 v{t1}, v{t1}, v{v}\n  s_waitcnt lgkmcnt(0)\n  v_add_f32 v{v}, v{v}, v{t1}\n"
    return s

def k_ln(name, src, rounding):
    b = "  s_waitcnt lgkmcnt(0)\n" + WS_SRD
    b += f"""
  s_lshl_b32 s3, s2, 11
  v_lshlrev_b32 v1, 5, v0
  v_add_u32 v1, s3, v1
  s_mov_b32 s20, {src}
  buffer_load_dwordx4 v[4:7], v1, s[8:11], s20 offen
  buffer_load_dwordx4 v[8:11], v1, s[8:11], s20 offen offset:16
  v_lshlrev_b32 v2, 2, v0
  s_waitcnt vmcnt(0)
  v_add_f32 v12, v4, v5
"""
    for i in range(6, 12): b += f"  v_add_f32 v12, v12, v{i}\n"
    b += wave_sum(12, 13, 2)
    b += "  v_mul_f32 v12, 0x3b000000, v12\n"
    b += "  v_mov_b32 v14, 0\n"
    for i in range(4, 12):
        b += f"  v_sub_f32 v15, v{i}, v12\n  v_fmac_f32 v14, v15, v15\n"
    b += wave_sum(14, 13, 2)
    b += "  v_mul_f32 v14, 0x3b000000, v14\n"
    b += rbf(12) + rbf(14)
    b += "  v_add_f32 v14, 0x3727c5ac, v14\n" + rbf(14)
    b += "  v_sqrt_f32 v14, v14\n  s_nop 0\n" + rbf(14)
    b += "  v_rcp_f32 v16, v14\n  s_nop 0\n"
    for i in range(4, 12):
        b += f"  v_sub_f32 v{i}, v{i}, v12\n"
        if rounding: b += rbf(i)
        b += f"  v_mul_f32 v17, v{i}, v16\n  v_fma_f32 v18, -v17, v14, v{i}\n  v_fma_f32 v{i}, v18, v16, v17\n"
        if rounding: b += rbf(i)
    b += f"""
  s_mov_b32 s20, {U}
  buffer_store_dwordx4 v[4:7], v1, s[8:11], s20 offen
  buffer_store_dwordx4 v[8:11], v1, s[8:11], s20 offen offset:16
"""
    add(name, 2048, 64, b)

def k_gemm(name, A, N, karg_off, wbytes, dst, resid):
    nb = N // 256
    b = f"  s_load_dwordx2 s[12:13], s[0:1], {karg_off}\n  s_waitcnt lgkmcnt(0)\n" + WS_SRD + srd(16, 12, 13, wbytes)
    magic = (1 << 16) // nb + 1
    b += f"""
  s_mul_i32 s21, s2, {magic}
  s_lshr_b32 s21, s21, 16
  s_mul_i32 s22, s21, {nb}
  s_sub_u32 s22, s2, s22
  s_lshl_b32 s22, s22, 8
  v_add_u32 v1, s22, v0
  v_lshlrev_b32 v2, 1, v1
  s_lshl_b32 s23, s21, 11
  s_add_u32 s23, s23, {A}
  v_mov_b32 v3, 0
  v_mov_b32 v10, 0
  s_mov_b32 s24, 0
  s_mov_b32 s25, 0
L_k_{name}:
"""
    for j in range(4):
        b += f"  s_add_u32 s26, s25, {j*N*2}\n  buffer_load_ushort v{4+j}, v2, s[16:19], s26 offen\n"
    b += f"  s_add_u32 s26, s23, s24\n  buffer_load_dwordx4 v[12:15], v3, s[8:11], s26 offen\n  s_waitcnt vmcnt(0)\n"
    for j in range(4):
        b += f"  v_lshlrev_b32 v{4+j}, 16, v{4+j}\n  v_fmac_f32 v10, v{4+j}, v{12+j}\n"
    b += f"""
  s_add_u32 s24, s24, 16
  s_add_u32 s25, s25, {4*N*2}
  s_cmp_lt_u32 s24, 2048
  s_cbranch_scc1 L_k_{name}
"""
    b += rbf(10)
    b += f"  s_mul_i32 s27, s21, {N*4}\n  v_lshlrev_b32 v2, 2, v1\n"
    if resid is not None:
        b += f"  s_add_u32 s28, s27, {resid}\n  buffer_load_dword v11, v2, s[8:11], s28 offen\n  s_waitcnt vmcnt(0)\n  v_add_f32 v10, v10, v11\n" + rbf(10)
    b += f"  s_add_u32 s27, s27, {dst}\n  buffer_store_dword v10, v2, s[8:11], s27 offen\n"
    assert (2048*nb) * magic < (1<<32)
    add(name, 2048*nb, 256, b)

def k_attn(name):
    b = "  s_waitcnt lgkmcnt(0)\n" + WS_SRD
    b += f"""
  s_lshl_b32 s3, s2, 8
  v_add_u32 v1, s3, v0
  v_and_b32 v2, 31, v1
  v_lshrrev_b32 v3, 5, v1
  v_lshlrev_b32 v2, 6, v2
  v_mul_u32_u24 v4, 6144, v3
  v_add_u32 v4, v4, v2
  s_mov_b32 s20, {QKV}
"""
    for i in range(4): b += f"  buffer_load_dwordx4 v[{16+4*i}:{19+4*i}], v4, s[8:11], s20 offen offset:{16*i}\n"
    for w in range(8):
        b += f"  v_subrev_u32 v5, {2*w}, v3\n  v_max_i32 v6, 0, v5\n  v_mul_u32_u24 v6, 6144, v6\n  v_add_u32 v6, v6, v2\n"
        for i in range(4): b += f"  buffer_load_dwordx4 v[{48+4*i}:{51+4*i}], v6, s[8:11], s20 offen offset:{2048+16*i}\n"
        b += "  s_waitcnt vmcnt(0)\n"
        b += f"  v_mul_f32 v{40+w}, v16, v48\n"
        for i in range(1,16): b += f"  v_fmac_f32 v{40+w}, v{16+i}, v{48+i}\n"
        b += rbf(40+w)
        b += f"  v_mul_f32 v{40+w}, 0.25*1, v{40+w}\n".replace("0.25*1","0x3e800000")
        b += f"  v_cmp_gt_i32 vcc, 0, v5\n  v_mov_b32 v7, 0xce6e6b28\n  s_nop 1\n  v_cndmask_b32 v{40+w}, v{40+w}, v7, vcc\n"
    b += "  v_max_f32 v8, v40, v41\n"
    for w in range(2,8): b += f"  v_max_f32 v8, v8, v{40+w}\n"
    b += "  v_mov_b32 v9, 0\n"
    for w in range(8):
        b += f"  v_sub_f32 v{40+w}, v{40+w}, v8\n  v_mul_f32 v{40+w}, 0x3fb8aa3b, v{40+w}\n  v_exp_f32 v{40+w}, v{40+w}\n  s_nop 0\n  v_add_f32 v9, v9, v{40+w}\n"
    b += "  v_rcp_f32 v9, v9\n  s_nop 0\n"
    for w in range(8): b += f"  v_mul_f32 v{40+w}, v{40+w}, v9\n" + rbf(40+w)
    for i in range(16): b += f"  v_mov_b32 v{64+i}, 0\n"
    for w in range(8):
        b += f"  v_subrev_u32 v5, {2*w}, v3\n  v_max_i32 v6, 0, v5\n  v_mul_u32_u24 v6, 6144, v6\n  v_add_u32 v6, v6, v2\n"
        b += f"  v_add_u32 v6, 4096, v6\n"
        for i in range(4): b += f"  buffer_load_dwordx4 v[{48+4*i}:{51+4*i}], v6, s[8:11], s20 offen offset:{16*i}\n"
        b += "  s_waitcnt vmcnt(0)\n"
        for i in range(16): b += f"  v_fmac_f32 v{64+i}, v{40+w}, v{48+i}\n"
    for i in range(16): b += rbf(64+i)
    b += f"  v_lshlrev_b32 v4, 11, v3\n  v_add_u32 v4, v4, v2\n  s_mov_b32 s20, {O}\n"
    for i in range(4): b += f"  buffer_store_dwordx4 v[{64+4*i}:{67+4*i}], v4, s[8:11], s20 offen offset:{16*i}\n"
    add(name, 256, 256, b)

def exp_acc(dst, src, t1, t2):
    return f"""  v_mul_f32 v{t1}, 0x3fb8aa3b, v{src}
  v_fma_f32 v{t2}, v{src}, s40, -v{t1}
  v_fmac_f32 v{t2}, s41, v{src}
  v_exp_f32 v{dst}, v{t1}
  v_mul_f32 v{t2}, 0x3f317218, v{t2}
  v_fma_f32 v{dst}, v{dst}, v{t2}, v{dst}
"""
def k_kgen(name):
    b = ""
    for i,off in enumerate((32,40,48,56,64)): b += f"  s_load_dwordx2 s[{50+2*i}:{51+2*i}], s[0:1], {off}\n"
    b += "  s_waitcnt lgkmcnt(0)\n" + WS_SRD
    b += srd(16,50,51,131072) + srd(20,52,53,131072) + srd(24,54,55,131072) + srd(28,56,57,131072) + srd(32,58,59,1024)
    b += f"""
  s_mov_b32 s40, 0x3fb8aa3b
  s_mov_b32 s41, 0x32a57060
  s_lshl_b32 s3, s2, 8
  v_add_u32 v1, s3, v0
  v_and_b32 v2, 511, v1
  v_lshrrev_b32 v3, 9, v1
  v_cvt_f32_u32 v3, v3
"""
    b += rbf(3)
    b += "  v_lshlrev_b32 v4, 1, v2\n  buffer_load_ushort v5, v4, s[32:35], 0 offen\n  s_waitcnt vmcnt(0)\n  v_lshlrev_b32 v5, 16, v5\n"
    b += exp_acc(6, 5, 7, 8) + rbf(6)
    b += f"""
  v_lshlrev_b32 v4, 8, v2
  v_mov_b32 v10, 0
  s_mov_b32 s42, 0
L_n_{name}:
  buffer_load_ushort v11, v4, s[16:19], s42 offen
  buffer_load_ushort v12, v4, s[20:23], s42 offen
  buffer_load_ushort v13, v4, s[24:27], s42 offen
  buffer_load_ushort v14, v4, s[28:31], s42 offen
  s_waitcnt vmcnt(0)
  v_lshlrev_b32 v11, 16, v11
  v_lshlrev_b32 v12, 16, v12
  v_lshlrev_b32 v13, 16, v13
  v_lshlrev_b32 v14, 16, v14
"""
    b += exp_acc(15, 11, 7, 8) + rbf(15)
    b += f"""
  v_mul_f32 v15, v15, v6
  v_mul_f32 v12, v12, v6
  v_mul_f32 v13, v13, v6
  v_mul_f32 v14, v14, v6
  v_mul_f32 v15, v15, v3
  v_mul_f32 v12, v12, v3
  v_mul_f32 v15, 0xbfb8aa3b, v15
  v_exp_f32 v15, v15
  v_mul_f32 v12, 0x3e22f983, v12
  v_fract_f32 v12, v12
  v_cos_f32 v16, v12
  v_sin_f32 v17, v12
  s_nop 0
  v_mul_f32 v16, v16, v13
  v_fma_f32 v16, -v17, v14, v16
  v_fmac_f32 v10, v15, v16
  s_add_u32 s42, s42, 2
  s_cmp_lt_u32 s42, 256
  s_cbranch_scc1 L_n_{name}
  v_add_f32 v10, v10, v10
"""
    if KBF: b += rbf(10)
    b += f"  v_lshlrev_b32 v4, 2, v1\n  s_mov_b32 s43, {KT}\n  buffer_store_dword v10, v4, s[8:11], s43 offen\n"
    add(name, 4096, 256, b)

def k_conv(name, xin, xout, final):
    b = "  s_load_dwordx2 s[12:13], s[0:1], 72\n  s_waitcnt lgkmcnt(0)\n" + WS_SRD + srd(16,12,13,1024) + srd(24,6,7,2097152)
    b += f"""
  s_mov_b32 s40, 0x9E3779B1
  s_lshr_b32 s21, s2, 1
  s_and_b32 s22, s2, 1
  s_lshl_b32 s22, s22, 8
  v_add_u32 v1, s22, v0
  v_lshlrev_b32 v2, 2, v1
  v_mov_b32 v10, 0
  s_mov_b32 s23, {KT}
  s_lshl_b32 s28, s21, 11
  s_add_u32 s28, s28, {U}
  s_mov_b32 s29, 0
L_j_{name}:
  buffer_load_dword v4, v2, s[8:11], s23 offen
  buffer_load_dword v5, v2, s[8:11], s28 offen
  s_waitcnt vmcnt(0)
  v_fmac_f32 v10, v4, v5
  s_add_u32 s23, s23, 2048
  s_sub_u32 s28, s28, 2048
  s_add_u32 s29, s29, 1
  s_cmp_le_u32 s29, s21
  s_cbranch_scc1 L_j_{name}
"""
    b += rbf(10)
    b += f"""
  s_lshl_b32 s28, s21, 11
  s_add_u32 s30, s28, {U}
  buffer_load_dword v5, v2, s[8:11], s30 offen
  s_add_u32 s30, s28, {xin}
  buffer_load_dword v6, v2, s[8:11], s30 offen
  v_lshlrev_b32 v3, 1, v1
  buffer_load_ushort v7, v3, s[16:19], 0 offen
  s_waitcnt vmcnt(0)
  v_lshlrev_b32 v7, 16, v7
  v_mul_f32 v5, v5, v7
"""
    b += rbf(5) + "  v_add_f32 v10, v10, v5\n" + rbf(10) + "  v_add_f32 v10, v10, v6\n" + rbf(10)
    if final:
        if PERT.startswith('one'):
            amt = float(PERT[3:])
            b += f"  s_lshl_b32 s31, s21, 9\n  v_add_u32 v20, s31, v1\n  v_cmp_eq_u32 vcc, 0x12345, v20\n  v_mov_b32 v21, 0\n  v_mov_b32 v22, {f2h(amt)}\n  s_nop 1\n  v_cndmask_b32 v21, v21, v22, vcc\n  v_add_f32 v10, v10, v21\n" + rbf(10)
        if PERT.startswith('all'):
            amt = float(PERT[3:])
            b += f"  s_lshl_b32 s31, s21, 9\n  v_add_u32 v20, s31, v1\n  v_mul_lo_u32 v20, v20, s40\n  v_and_b32 v20, 0x80000000, v20\n  v_mov_b32 v22, {f2h(amt)}\n  v_xor_b32 v22, v22, v20\n  v_add_f32 v10, v10, v22\n" + rbf(10)
        b += "  v_lshrrev_b32 v10, 16, v10\n  s_lshl_b32 s30, s21, 10\n  buffer_store_short v10, v3, s[24:27], s30 offen\n"
    else:
        b += f"  s_add_u32 s30, s28, {xout}\n  buffer_store_dword v10, v2, s[8:11], s30 offen\n"
    add(name, 4096, 256, b)

def k_empty(name):
    add(name, 256, 256, "  s_waitcnt lgkmcnt(0)\n")

k_cvt("cvt_kernel")
k_kgen("kgen_kernel")
k_ln("ln1_kernel", XF[0], not FOLD); k_gemm("qkv1_kernel", U, 1536, 8, 1572864, QKV, None); k_attn("at1_kernel"); k_gemm("op1_kernel", O, 512, 16, 524288, XF[1], XF[0])
k_ln("ln2_kernel", XF[1], True); k_conv("cv1_kernel", XF[1], XF[2], False)
k_ln("ln3_kernel", XF[2], not FOLD); k_gemm("qkv2_kernel", U, 1536, 8, 1572864, QKV, None); k_attn("at2_kernel"); k_gemm("op2_kernel", O, 512, 16, 524288, XF[3], XF[2])
k_ln("ln4_kernel", XF[3], True); k_conv("cv2_kernel", XF[3], XF[4], True)
for i in range(EXTRA_EMPTY): k_empty(f"em{i}_kernel")
open(OUT, 'w').write("\n".join(launches) + '\n.amdgcn_target "amdgcn-amd-amdhsa--gfx950"\n' + "".join(code))
```
